```python
import torch

def _softmax(x, axis=-1):
    return torch.softmax(x, dim=axis)
def _gelu(x):
    return torch.nn.functional.gelu(x, approximate="tanh")
def _silu(x):
    return torch.nn.functional.silu(x)
def _sigmoid(x):
    return torch.sigmoid(x)
def _layernorm(x, axis=-1, eps=1e-5):
    m = x.mean(dim=axis, keepdim=True)
    v = x.var(dim=axis, keepdim=True, unbiased=False)
    return (x - m) / torch.sqrt(v + eps)
def _scatter_add(tgt, idx, src, axis=0):
    return tgt.clone().index_add_(axis, idx, src)
def _segment_sum(src, seg, n):
    out = torch.zeros((n,) + src.shape[1:], dtype=src.dtype)
    return out.index_add_(0, seg, src)
def _pad(x, pw):
    flat = tuple(v for pair in reversed(pw) for v in pair)
    return torch.nn.functional.pad(x, flat)

kernel_name = 'sequential_preLN__compressed_kv_cla__mixer_token_mlp__prompt'

def setup_inputs():

    _w = (lambda a: (lambda t: t.to(torch.bfloat16) if t.is_floating_point() else t)(torch.as_tensor(a)))
    def _A_setup():
        B, H, Sq, Sk, D, M = 1, 32, 2048, 2048, 128, 512
        Dc = 4 * D
        return {
            "x": _w((lambda *s: torch.randn(*s, dtype=torch.bfloat16) * 0.05)(B, Sq, M)),
            "c_kv": _w((lambda *s: torch.randn(*s, dtype=torch.bfloat16) * 0.2)(B, Sk, Dc)),
            "w_q": _w((lambda *s: torch.randn(*s, dtype=torch.bfloat16) * 3.2)(M, H, D) * (M ** -0.5)),
            "w_uk": _w((lambda *s: torch.randn(*s, dtype=torch.bfloat16) * 6.4)(Dc, H, D) * (Dc ** -0.5)),
            "w_uv": _w((lambda *s: torch.randn(*s, dtype=torch.bfloat16) * 0.2)(Dc, H, D) * (Dc ** -0.5)),
            "w_o": _w((lambda *s: torch.randn(*s, dtype=torch.bfloat16) * 0.2)(H, D, M) * ((H * D) ** -0.5)),
        }
    _A_in = _A_setup()

    def _B_setup():
        B, S, D, F = 1, 2048, 512, 1792
        return {
            "x": _w((lambda *s: torch.randn(*s, dtype=torch.bfloat16) * 0.05)(B, S, D)),
            "w1": _w((lambda *s: torch.randn(*s, dtype=torch.bfloat16) * 0.4)(S, F) * (S ** -0.5)),
            "b1": _w((lambda *s: torch.randn(*s, dtype=torch.bfloat16) * 3.2)(F) * 0.02),
            "w2": _w((lambda *s: torch.randn(*s, dtype=torch.bfloat16) * 0.2)(F, S) * (F ** -0.5)),
            "b2": _w((lambda *s: torch.randn(*s, dtype=torch.bfloat16) * 0.4)(S) * 0.02),
        }
    _B_in = _B_setup()

    return {
        "A_x": _A_in["x"],
        "A_c_kv": _A_in["c_kv"],
        "A_w_q": _A_in["w_q"],
        "A_w_uk": _A_in["w_uk"],
        "A_w_uv": _A_in["w_uv"],
        "A_w_o": _A_in["w_o"],
        "B_x": _B_in["x"],
        "B_w1": _B_in["w1"],
        "B_b1": _B_in["b1"],
        "B_w2": _B_in["w2"],
        "B_b2": _B_in["b2"],
    }

def reference(A_x, A_c_kv, A_w_q, A_w_uk, A_w_uv, A_w_o, B_x, B_w1, B_b1, B_w2, B_b2):
    def _A_ref(x, c_kv, w_q, w_uk, w_uv, w_o):
        B, Sq, M = x.shape[0], x.shape[1], x.shape[2]
        Sk = c_kv.shape[1]
        H, D = w_q.shape[1], w_q.shape[2]
        q = torch.einsum("bqm,mhd->bhqd", x, w_q)
        k = torch.einsum("bkc,chd->bhkd", c_kv, w_uk)
        v = torch.einsum("bkc,chd->bhkd", c_kv, w_uv)
        scores = torch.einsum("bhqd,bhkd->bhqk", q, k) * (D ** -0.5)
        off = Sk - Sq
        qi = torch.arange(Sq)[:, None]
        kj = torch.arange(Sk)[None, :]
        cmask = kj <= (qi + off)
        scores = torch.where(cmask[None, None], scores, -1e9)
        p = _softmax(scores, axis=-1)
        ctx = torch.einsum("bhqk,bhkd->bhqd", p, v)
        return torch.einsum("bhqd,hdm->bqm", ctx, w_o)

    def _B_ref(x, w1, b1, w2, b2):
        B, S, D = x.shape
        h = _layernorm(x, axis=-1)
        u = torch.einsum("bsd,sf->bdf", h, w1) + b1
        u = _gelu(u)
        y = torch.einsum("bdf,fs->bds", u, w2) + b2
        return (lambda x, *d: x.permute(*d))(y, 0, 2, 1)

    x = A_x
    h = x + _A_ref(_layernorm(x, axis=-1), A_c_kv, A_w_q, A_w_uk, A_w_uv, A_w_o)
    h2 = h + _B_ref(_layernorm(h, axis=-1), B_w1, B_b1, B_w2, B_b2)
    return h2
```

```python
import re
REG = re.compile(r'^(-|abs\()?([vsa])(\d+)\)?$')
RNG = re.compile(r'^(-)?([vsa])\[(\d+):(\d+)\]$')
def regs(tok):
    tok = tok.strip()
    m = REG.match(tok)
    if m: return {(m.group(2), int(m.group(3)))}
    m = RNG.match(tok)
    if m: return {(m.group(2), i) for i in range(int(m.group(3)), int(m.group(4)) + 1)}
    if tok == 'vcc': return {('s', 'vcc')}
    if tok == 'exec': return {('s', 'exec')}
    if tok == 'm0': return {('s', 'm0')}
    return set()
TRANS = ('v_exp_f32', 'v_log_f32', 'v_rcp_f32', 'v_rsq_f32', 'v_sqrt_f32')
class Ins:
    def __init__(s, text):
        s.text = text
        t = text.split(';')[0].strip()
        s.label = t.endswith(':')
        s.op = t.split()[0] if t else ''
        rest = t[len(s.op):].strip()
        ops = [o.strip() for o in rest.split(',')] if rest else []
        s.mods = ''
        if ops:
            parts = ops[-1].split()
            ops[-1] = parts[0]; s.mods = ' '.join(parts[1:])
        s.ops = ops
        op = s.op
        s.mfma = op.startswith('v_mfma')
        s.valu = op.startswith('v_') and not s.mfma
        s.trans = op in TRANS
        s.salu = op.startswith('s_')
        s.ds = op.startswith('ds_')
        s.vmem = op.startswith('buffer_') or op.startswith('global_')
        s.dpp = 'row_' in s.mods or op.endswith('_dpp')
        s.perm = op.startswith('v_permlane')
        s.wr = set(); s.rd = set()
        R = [regs(o) for o in ops]
        if s.label or not op: return
        if s.vmem:
            lds = 'lds' in s.mods.split()
            s.ldsdma = lds
            if 'store' in op or lds:
                for r in R: s.rd |= r
            else:
                s.wr |= R[0]
                for r in R[1:]: s.rd |= r
            if lds: s.rd |= {('s', 'm0')}
        elif s.ds:
            if op.startswith('ds_write'):
                for r in R: s.rd |= r
            else:
                s.wr |= R[0]
                for r in R[1:]: s.rd |= r
        elif op.startswith('v_cmp'):
            s.wr |= R[0]
            for r in R[1:]: s.rd |= r
        elif s.perm:
            s.wr |= R[0] | R[1]; s.rd |= R[0] | R[1]
        elif op in ('s_nop', 's_waitcnt', 's_barrier', 's_endpgm', 's_setprio', 's_branch') or op.startswith('s_cbranch') or op.startswith('s_cmp'):
            for r in R: s.rd |= r
        else:
            if R: s.wr |= R[0]
            for r in R[1:]: s.rd |= r
            if op in ('v_fmac_f32', 'v_add_f32_dpp') or s.mfma and False: s.rd |= R[0]
            if op == 'v_cndmask_b32' and len(ops) == 3: s.rd |= {('s', 'vcc')}
            if op.startswith('v_add_co') or op.startswith('v_addc_co'): s.wr |= R[1]
            if op == 's_and_saveexec_b64': s.wr |= {('s', 'exec')}
        if s.mfma:
            s.cregs = R[3]; s.abregs = R[1] | R[2]
    def states(s):
        if s.op == 's_nop': return int(s.ops[0], 0) + 1
        if s.label or not s.op: return 0
        return 1
def need(p, c):
    n = 0
    vw = {r for r in p.wr if r[0] in 'va'}
    sw = {r for r in p.wr if r[0] == 's'}
    if p.valu:
        if c.mfma and vw & c.rd: n = max(n, 2)
        if p.trans and c.valu and vw & c.rd: n = max(n, 1)
        if (c.perm or c.dpp) and vw & c.rd: n = max(n, 2)
        if c.op.startswith('v_read') and vw & c.rd: n = max(n, 1)
        if sw & c.rd:
            if c.valu or c.mfma: n = max(n, 2)
            if c.vmem: n = max(n, 5)
            if c.salu: n = max(n, 1)
            if c.op.startswith('v_read'): n = max(n, 4)
    if p.mfma:
        if c.mfma:
            if vw & c.abregs: n = max(n, 12)
            if vw & c.cregs and vw != c.cregs: n = max(n, 10)
            if (vw & c.wr) and vw != c.cregs and not (vw == c.wr and not c.cregs): n = max(n, 12)
            if vw == c.wr and not c.cregs: n = max(n, 0)
        elif vw & (c.rd | c.wr): n = max(n, 12)
        if c.valu and p.cregs & c.wr: n = max(n, 7)
    if p.salu and ('s', 'm0') in p.wr and c.vmem and getattr(c, 'ldsdma', False): n = max(n, 1)
    if p.vmem and 'store' in p.op and ('x4' in p.op or 'x3' in p.op) and (p.rd & c.wr) and not c.salu:
        n = max(n, 2)
    if p.salu and ('s', 'exec') in p.wr and c.dpp: n = max(n, 0)
    return n
def pad(lines, report=None):
    out = []; hist = []
    nn = 0
    for ln in lines:
        c = Ins(ln)
        if c.op and not c.label and not c.op.startswith('.'):
            req = 0; dist = 0
            for p in reversed(hist):
                if dist >= 13: break
                r = need(p, c) - dist
                if r > req: req = r
                dist += p.states()
            while req > 0:
                k = min(req, 16)
                t = f's_nop {k-1}'
                out.append('  ' + t); hist.append(Ins(t)); req -= k; nn += 1
            hist.append(c)
            if len(hist) > 40: hist = hist[-20:]
        out.append(ln if (c.label or c.op.startswith('.')) else '  ' + ln.strip())
    if report is not None: report.append(nn)
    return out
class K:
    def __init__(s, name): s.name = name; s.l = []; s.uid = 0
    def __call__(s, t):
        for x in t.strip().split('\n'):
            x = x.strip()
            if x: s.l.append(x)
    def lab(s, base):
        s.uid += 1; return f'{s.name}_{base}{s.uid}'
    def srd(s, q, lo, hi, size):
        s(f's_mov_b32 s{q}, s{lo}\ns_and_b32 s{q+1}, s{hi}, 0xffff\ns_mov_b32 s{q+2}, {size}\ns_mov_b32 s{q+3}, 0x20000')
    def srd_off(s, q, lo, hi, off, size):
        s(f's_add_u32 s{q}, s{lo}, {off}\ns_addc_u32 s{q+1}, s{hi}, 0\ns_and_b32 s{q+1}, s{q+1}, 0xffff\ns_mov_b32 s{q+2}, {size}\ns_mov_b32 s{q+3}, 0x20000')
def vr(a, n=1): return f'v{a}' if n == 1 else f'v[{a}:{a+n-1}]'
def interleave(main, fill, ratio=None):
    out = []; n = len(main); m = len(fill); k = 0
    for i, g in enumerate(main):
        out += g
        e = (m * (i + 1)) // n
        out += fill[k:e]; k = e
    return out
def wrap(kernels, launches, header):
    txt = header + '\n'.join(launches) + '\n.amdgcn_target "amdgcn-amd-amdhsa--gfx950"\n.text\n'
    for k, nv, ns in kernels:
        rep = []
        body = pad(k.l, rep)
        txt += f'.globl {k.name}\n.p2align 8\n.type {k.name},@function\n{k.name}:\n' + '\n'.join(body) + '\n  s_endpgm\n'
    txt += '.section .rodata,"a"\n'
    for k, nv, ns in kernels:
        txt += f'''.p2align 6
.amdhsa_kernel {k.name}
  .amdhsa_next_free_vgpr {nv}
  .amdhsa_next_free_sgpr {ns}
  .amdhsa_accum_offset {(nv + 3) // 4 * 4}
  .amdhsa_group_segment_fixed_size 0
  .amdhsa_kernarg_size 112
  .amdhsa_user_sgpr_count 2
  .amdhsa_user_sgpr_kernarg_segment_ptr 1
  .amdhsa_system_sgpr_workgroup_id_x 1
.end_amdhsa_kernel
'''
    return txt
```

```python
from asmlib import *
MB = 1 << 20
XN_OFF, KV_OFF, QS_OFF, CTX_OFF, PART_OFF, H_OFF, HN_OFF, U_OFF = 0, 2*MB, 34*MB, 50*MB, 66*MB, 82*MB, 84*MB, 86*MB
WS_SIZE = 256 * MB
def allreduce(k, v, t, op='add'):
    o = 'v_add_f32' if op == 'add' else 'v_max_f32'
    for r in (8, 4, 2, 1):
        k(f'{o}_dpp v{v}, v{v}, v{v} row_ror:{r} row_mask:0xf bank_mask:0xf')
    k(f'v_mov_b32 v{t}, v{v}\nv_permlane16_swap_b32 v{t}, v{v}\n{o} v{v}, v{v}, v{t}')
    k(f'v_mov_b32 v{t}, v{v}\nv_permlane32_swap_b32 v{t}, v{v}\n{o} v{v}, v{v}, v{t}')
def unpack8(k, src, dst):
    for i in range(4):
        k(f'v_lshlrev_b32 v{dst+2*i}, 16, v{src+i}\nv_and_b32 v{dst+2*i+1}, 0xffff0000, v{src+i}')
def prologue(k, nwg, ptrs):
    k(f's_cmp_ge_u32 s2, {nwg}\ns_cbranch_scc1 {k.name}_end')
    for s, off in ptrs: k(f's_load_dwordx2 s[{s}:{s+1}], s[0:1], {off}')
    k('v_and_b32 v1, 63, v0\nv_lshrrev_b32 v2, 6, v0\nv_readfirstlane_b32 s3, v2')
    k('s_waitcnt lgkmcnt(0)')
def gen_k1():
    k = K('k1_kernel')
    prologue(k, 256, [(4, 0), (6, 8), (8, 24), (10, 32), (12, 104)])
    k('''s_and_b32 s17, s2, 7
    s_lshr_b32 s18, s2, 3
    s_and_b32 s14, s18, 7
    s_lshr_b32 s18, s18, 3
    s_lshr_b32 s15, s18, 1
    s_and_b32 s18, s18, 1
    s_lshl_b32 s16, s17, 1
    s_add_u32 s16, s16, s18
    s_cmp_eq_u32 s15, 0
    s_cselect_b32 s8, s8, s10
    s_cselect_b32 s9, s9, s11''')
    k.srd(20, 8, 9, 4*MB)
    k.srd(24, 6, 7, 2*MB)
    k.srd(28, 4, 5, 2*MB)
    k.srd_off(32, 12, 13, XN_OFF, 2*MB)
    k.srd_off(36, 12, 13, KV_OFF, 32*MB)
    k('''s_and_b32 s40, s3, 1
    s_lshl_b32 s41, s40, 1
    v_lshrrev_b32 v3, 5, v1
    v_add_u32 v4, s41, v3
    v_bfe_u32 v5, v1, 2, 3
    v_xor_b32 v5, v5, v4
    v_lshlrev_b32 v5, 6, v5
    v_lshl_add_u32 v5, v3, 13, v5
    v_and_b32 v6, 3, v1
    v_lshl_add_u32 v18, v6, 4, v5''')
    k('''s_lshl_b32 s41, s40, 2
    v_lshrrev_b32 v3, 4, v1
    v_add_u32 v4, s41, v3
    v_and_b32 v5, 7, v1
    v_xor_b32 v5, v5, v4
    v_lshlrev_b32 v5, 4, v5
    v_lshrrev_b32 v3, 3, v1
    v_lshl_add_u32 v19, v3, 10, v5''')
    k('''s_lshl_b32 s42, s3, 14
    s_lshl_b32 s45, s16, 9
    s_add_u32 s42, s42, s45
    s_lshl_b32 s43, s14, 18
    s_lshl_b32 s45, s3, 13
    s_add_u32 s43, s43, s45
    s_lshl_b32 s44, s3, 10''')
    def dma(stage):
        L = []
        b = stage & 1; k0 = stage * 64
        for n in range(4):
            L.append([f's_add_u32 m0, s44, {b*32768 + n*8192}', f's_add_u32 s46, s42, {(k0 + 16*n)*8192}', 'buffer_load_dwordx4 v18, s[20:23], s46 offen lds'])
            L.append([f's_add_u32 m0, s44, {65536 + b*32768 + n*8192}', f's_add_u32 s46, s43, {64*n*1024 + k0*2}', 'buffer_load_dwordx4 v19, s[24:27], s46 offen lds'])
        return L
    for g in dma(0): k('\n'.join(g))
    k('''s_lshl_b32 s47, s2, 3
    s_add_u32 s47, s47, s3
    s_lshl_b32 s48, s47, 10
    v_lshlrev_b32 v20, 4, v1
    buffer_load_dwordx4 v[24:27], v20, s[28:31], s48 offen''')
    k('''v_bfe_u32 v3, v1, 2, 2
    v_lshrrev_b32 v4, 5, v1
    v_lshl_add_u32 v4, v4, 3, v3
    v_lshlrev_b32 v4, 9, v4
    v_and_b32 v5, 16, v1
    v_lshl_add_u32 v4, v5, 1, v4
    v_and_b32 v5, 3, v1
    v_lshl_add_u32 v4, v5, 3, v4
    s_lshl_b32 s45, s40, 8
    v_add_u32 v4, s45, v4''')
    for b in range(4):
        k(f'v_xor_b32 v5, {b}, v3\nv_lshl_add_u32 v{10+b}, v5, 6, v4')
    k('''s_lshr_b32 s45, s3, 1
    s_lshl_b32 s45, s45, 13
    s_add_u32 s45, s45, 65536
    v_and_b32 v4, 31, v1
    v_lshlrev_b32 v4, 7, v4
    v_add_u32 v4, s45, v4
    v_bfe_u32 v5, v1, 1, 3
    v_lshrrev_b32 v3, 5, v1
    v_xor_b32 v5, v5, v3
    v_lshl_add_u32 v14, v5, 4, v4''')
    for ks in range(1, 4): k(f'v_xor_b32 v{14+ks}, {32*ks}, v14')
    k('s_waitcnt vmcnt(0)')
    unpack8(k, 24, 28)
    k('v_add_f32 v36, v28, v29')
    for i in range(2, 8): k(f'v_add_f32 v36, v36, v{28+i}')
    allreduce(k, 36, 37)
    k('v_mul_f32 v36, 0x3b000000, v36')
    for i in range(8): k(f'v_sub_f32 v{28+i}, v{28+i}, v36')
    k('v_mul_f32 v36, v28, v28')
    for i in range(1, 8): k(f'v_fmac_f32 v36, v{28+i}, v{28+i}')
    allreduce(k, 36, 37)
    k('''v_mov_b32 v37, 0x3727c5ac
    v_fmac_f32 v37, 0x3b000000, v36
    v_rsq_f32 v37, v37''')
    for i in range(8): k(f'v_mul_f32 v{28+i}, v{28+i}, v37')
    for i in range(4): k(f'v_cvt_pk_bf16_f32 v{24+i}, v{28+2*i}, v{29+2*i}')
    k('''s_lshr_b32 s48, s47, 5
    s_lshl_b32 s48, s48, 15
    s_and_b32 s49, s47, 31
    s_lshl_b32 s49, s49, 4
    s_add_u32 s48, s48, s49
    v_lshrrev_b32 v20, 1, v1
    v_lshlrev_b32 v20, 10, v20
    v_and_b32 v21, 1, v1
    v_lshl_add_u32 v20, v21, 9, v20
    buffer_store_dwordx4 v[24:27], v20, s[32:35], s48 offen''')
    def reads(stage, ks, st):
        b = stage & 1; W = 64 + st*24; C = 80 + st*24
        L = []
        for bw in range(4):
            for ii in range(2):
                L.append(f'ds_read_b64_tr_b16 v[{W+bw*4+ii*2}:{W+bw*4+ii*2+1}], v{10+bw} offset:{b*32768 + ks*8192 + ii*2048}')
        for bc in range(2):
            L.append(f'ds_read_b128 v[{C+bc*4}:{C+bc*4+3}], v{14+ks} offset:{b*32768 + bc*4096}')
        return L
    def body(typ):
        first = True
        for stage in range(8):
            k('s_waitcnt vmcnt(0)\ns_barrier')
            d = dma(stage + 1) if stage < 7 else []
            k('\n'.join(reads(stage, 0, 0)))
            for ks in range(4):
                st = ks & 1; W = 64 + st*24; C = 80 + st*24
                nxt = reads(stage, ks + 1, st ^ 1) if ks < 3 else []
                mf = []
                for bc in range(2):
                    for bw in range(4):
                        a = 128 + (bc*4 + bw)*16
                        A, B = (W+bw*4, C+bc*4) if typ == 0 else (C+bc*4, W+bw*4)
                        c = '0' if (stage == 0 and ks == 0) else f'v[{a}:{a+15}]'
                        mf.append(f'v_mfma_f32_32x32x16_bf16 v[{a}:{a+15}], v[{A}:{A+3}], v[{B}:{B+3}], {c}')
                if nxt:
                    k('\n'.join(nxt)); k('s_waitcnt lgkmcnt(10)')
                else:
                    k('s_waitcnt lgkmcnt(0)')
                fill = []
                for g in d[ks*2:ks*2+2]: fill += g
                k('\n'.join(interleave([[m] for m in mf], fill)))
        k('''s_lshl_b32 s50, s16, 1
        s_add_u32 s50, s50, s40
        s_lshl_b32 s50, s50, 5
        s_lshl_b32 s51, s14, 2
        s_add_u32 s50, s50, s51
        s_lshr_b32 s51, s3, 1
        s_add_u32 s50, s50, s51
        s_lshl_b32 s50, s50, 15
        v_lshlrev_b32 v20, 4, v1''')
        n = 0
        for bc in range(2):
            for bw in range(4):
                a = 128 + (bc*4 + bw)*16
                for half in range(2):
                    t = 64 + (n % 8)*4; n += 1
                    for i in range(4): k(f'v_cvt_pk_bf16_f32 v{t+i}, v{a+half*8+2*i}, v{a+half*8+2*i+1}')
                    off = (bc*8 + 2*bw + half)*1024 if typ == 0 else 16384 + ((2*bc + half)*4 + bw)*1024
                    k(f's_add_u32 s51, s50, {off}\nbuffer_store_dwordx4 v[{t}:{t+3}], v20, s[36:39], s51 offen')
    lv = k.lab('v')
    k(f's_cmp_eq_u32 s15, 1\ns_cbranch_scc1 {lv}')
    body(0)
    k(f's_branch {k.name}_end\n{lv}:')
    body(1)
    k(f'{k.name}_end:')
    return k, 256, 64, '; @launch kernel=k1_kernel grid=(256,1,1) block=(512,1,1) lds=131072'
```

```python
import sys
from asmlib import *
import k1
NAME = 'sequential_preLN__compressed_kv_cla__mixer_token_mlp__prompt'
ref = open(f'cdna_kernels/{NAME}.s.ref').read().split('\n')
hdr = '\n'.join(l for l in ref[:15]) + '\n'
mods = [k1.gen_k1]
for m, f in (('k2', 'gen_k2'), ('k3', 'gen_k3'), ('k4', 'gen_k4'), ('k5', 'gen_k5'), ('k5', 'gen_k6')):
    try:
        mod = __import__(m); mods.append(getattr(mod, f))
    except ImportError: pass
ks = []; ls = []
for f in mods:
    k, nv, ns, l = f(); ks.append((k, nv, ns)); ls.append(l)
out = sys.argv[1] if len(sys.argv) > 1 else f'cdna_kernels/{NAME}.s'
open(out, 'w').write(wrap(ks, ls, hdr))
print('written', out)
```

```python
import re
REG = re.compile(r'^(-|abs\()?([vsa])(\d+)\)?$')
RNG = re.compile(r'^(-)?([vsa])\[(\d+):(\d+)\]$')
def regs(tok):
    tok = tok.strip()
    m = REG.match(tok)
    if m: return {(m.group(2), int(m.group(3)))}
    m = RNG.match(tok)
    if m: return {(m.group(2), i) for i in range(int(m.group(3)), int(m.group(4)) + 1)}
    if tok == 'vcc': return {('s', 'vcc')}
    if tok == 'exec': return {('s', 'exec')}
    if tok == 'm0': return {('s', 'm0')}
    return set()
TRANS = ('v_exp_f32', 'v_log_f32', 'v_rcp_f32', 'v_rsq_f32', 'v_sqrt_f32')
class Ins:
    def __init__(s, text):
        s.text = text
        t = text.split(';')[0].strip()
        s.label = t.endswith(':')
        s.op = t.split()[0] if t else ''
        rest = t[len(s.op):].strip()
        ops = [o.strip() for o in rest.split(',')] if rest else []
        s.mods = ''
        if ops:
            parts = ops[-1].split()
            ops[-1] = parts[0]; s.mods = ' '.join(parts[1:])
        s.ops = ops
        op = s.op
        s.mfma = op.startswith('v_mfma')
        s.valu = op.startswith('v_') and not s.mfma
        s.trans = op in TRANS
        s.salu = op.startswith('s_')
        s.ds = op.startswith('ds_')
        s.vmem = op.startswith('buffer_') or op.startswith('global_')
        s.dpp = 'row_' in s.mods or op.endswith('_dpp')
        s.perm = op.startswith('v_permlane')
        s.wr = set(); s.rd = set()
        R = [regs(o) for o in ops]
        if s.label or not op: return
        if s.vmem:
            lds = 'lds' in s.mods.split()
            s.ldsdma = lds
            if 'store' in op or lds:
                for r in R: s.rd |= r
            else:
                s.wr |= R[0]
                for r in R[1:]: s.rd |= r
            if lds: s.rd |= {('s', 'm0')}
        elif s.ds:
            if op.startswith('ds_write'):
                for r in R: s.rd |= r
            else:
                s.wr |= R[0]
                for r in R[1:]: s.rd |= r
        elif op.startswith('v_cmp'):
            s.wr |= R[0]
            for r in R[1:]: s.rd |= r
        elif s.perm:
            s.wr |= R[0] | R[1]; s.rd |= R[0] | R[1]
        elif op in ('s_nop', 's_waitcnt', 's_barrier', 's_endpgm', 's_setprio', 's_branch') or op.startswith('s_cbranch') or op.startswith('s_cmp'):
            for r in R: s.rd |= r
        else:
            if R: s.wr |= R[0]
            for r in R[1:]: s.rd |= r
            if op in ('v_fmac_f32', 'v_add_f32_dpp') or s.mfma and False: s.rd |= R[0]
            if op == 'v_cndmask_b32' and len(ops) == 3: s.rd |= {('s', 'vcc')}
            if op.startswith('v_add_co') or op.startswith('v_addc_co'): s.wr |= R[1]
            if op == 's_and_saveexec_b64': s.wr |= {('s', 'exec')}
        if s.mfma:
            s.cregs = R[3]; s.abregs = R[1] | R[2]
    def states(s):
        if s.op == 's_nop': return int(s.ops[0], 0) + 1
        if s.label or not s.op: return 0
        return 1
def need(p, c):
    n = 0
    vw = {r for r in p.wr if r[0] in 'va'}
    sw = {r for r in p.wr if r[0] == 's'}
    if p.valu:
        if c.mfma and vw & c.rd: n = max(n, 2)
        if p.trans and c.valu and vw & c.rd: n = max(n, 1)
        if (c.perm or c.dpp) and vw & c.rd: n = max(n, 2)
        if c.op.startswith('v_read') and vw & c.rd: n = max(n, 1)
        if sw & c.rd:
            if c.valu or c.mfma: n = max(n, 2)
            if c.vmem: n = max(n, 5)
            if c.salu: n = max(n, 1)
            if c.op.startswith('v_read'): n = max(n, 4)
    if p.mfma:
        if c.mfma:
            if vw & c.abregs: n = max(n, 12)
            if vw & c.cregs and vw != c.cregs: n = max(n, 10)
            if (vw & c.wr) and vw != c.cregs and not (vw == c.wr and not c.cregs): n = max(n, 12)
            if vw == c.wr and not c.cregs: n = max(n, 0)
        elif vw & (c.rd | c.wr): n = max(n, 12)
        if c.valu and p.cregs & c.wr: n = max(n, 7)
    if p.salu and ('s', 'm0') in p.wr and c.vmem and getattr(c, 'ldsdma', False): n = max(n, 1)
    if p.vmem and 'store' in p.op and ('x4' in p.op or 'x3' in p.op) and (p.rd & c.wr) and not c.salu:
        n = max(n, 2)
    if p.salu and ('s', 'exec') in p.wr and c.dpp: n = max(n, 0)
    return n
def pad(lines, report=None):
    out = []; hist = []
    nn = 0
    for ln in lines:
        c = Ins(ln)
        if c.op and not c.label and not c.op.startswith('.'):
            req = 0; dist = 0
            for p in reversed(hist):
                if dist >= 13: break
                r = need(p, c) - dist
                if r > req: req = r
                dist += p.states()
            while req > 0:
                k = min(req, 16)
                t = f's_nop {k-1}'
                out.append('  ' + t); hist.append(Ins(t)); req -= k; nn += 1
            hist.append(c)
            if len(hist) > 40: hist = hist[-20:]
        out.append(ln if (c.label or c.op.startswith('.')) else '  ' + ln.strip())
    if report is not None: report.append(nn)
    return out
class K:
    def __init__(s, name): s.name = name; s.l = []; s.uid = 0
    def __call__(s, t):
        for x in t.strip().split('\n'):
            x = x.strip()
            if x: s.l.append(x)
    def lab(s, base):
        s.uid += 1; return f'{s.name}_{base}{s.uid}'
    def srd(s, q, lo, hi, size):
        s(f's_mov_b32 s{q}, s{lo}\ns_and_b32 s{q+1}, s{hi}, 0xffff\ns_mov_b32 s{q+2}, {size}\ns_mov_b32 s{q+3}, 0x20000')
    def srd_off(s, q, lo, hi, off, size):
        s(f's_add_u32 s{q}, s{lo}, {off}\ns_addc_u32 s{q+1}, s{hi}, 0\ns_and_b32 s{q+1}, s{q+1}, 0xffff\ns_mov_b32 s{q+2}, {size}\ns_mov_b32 s{q+3}, 0x20000')
def vr(a, n=1): return f'v{a}' if n == 1 else f'v[{a}:{a+n-1}]'
def interleave(main, fill, ratio=None):
    out = []; n = len(main); m = len(fill); k = 0
    for i, g in enumerate(main):
        out += g
        e = (m * (i + 1)) // n
        out += fill[k:e]; k = e
    return out
import os
STAMP = os.environ.get('STAMP', '')
def wrap(kernels, launches, header):
    txt = header + '\n'.join(launches) + '\n.amdgcn_target "amdgcn-amd-amdhsa--gfx950"\n.text\n'
    for k, nv, ns in kernels:
        rep = []
        body = pad(k.l, rep)
        txt += f'.globl {k.name}\n.p2align 8\n.type {k.name},@function\n{k.name}:\n' + '\n'.join(body) + '\n  s_endpgm\n'
    txt += '.section .rodata,"a"\n'
    for k, nv, ns in kernels:
        if STAMP: nv, ns = 256, 96
        txt += f'''.p2align 6
.amdhsa_kernel {k.name}
  .amdhsa_next_free_vgpr {nv}
  .amdhsa_next_free_sgpr {ns}
  .amdhsa_accum_offset {(nv + 3) // 4 * 4}
  .amdhsa_group_segment_fixed_size 0
  .amdhsa_kernarg_size 112
  .amdhsa_user_sgpr_count 2
  .amdhsa_user_sgpr_kernarg_segment_ptr 1
  .amdhsa_system_sgpr_workgroup_id_x 1
.end_amdhsa_kernel
'''
    return txt

import os
STAMP = os.environ.get('STAMP', '')
def stamp_init(k, wsl, wsh, sv=17):
    k.sv = sv
    if k.name[:2] not in STAMP: return
    k.srd_off(72, wsl, wsh, 120 << 20, 1 << 20)
    k(f's_lshl_b32 s76, s2, 10\ns_lshl_b32 s77, s3, 7\ns_add_u32 s76, s76, s77\nv_mov_b32 v{sv}, s76')
def stamp(k, idx):
    if k.name[:2] not in STAMP: return
    a = k.sv
    k(f's_memrealtime s[78:79]\ns_memtime s[80:81]\ns_waitcnt lgkmcnt(0)\nv_mov_b32 v{a+1}, s78\nv_mov_b32 v{a+2}, s80\nbuffer_store_dword v{a+1}, v{a}, s[72:75], 0 offen offset:{idx*8}\nbuffer_store_dword v{a+2}, v{a}, s[72:75], 0 offen offset:{idx*8+4}')
```

```python
from asmlib import *
MB = 1 << 20
XN_OFF, KV_OFF, QS_OFF, CTX_OFF, PART_OFF, H_OFF, HN_OFF, U_OFF = 0, 2*MB, 34*MB, 50*MB, 66*MB, 82*MB, 84*MB, 86*MB
WS_SIZE = 256 * MB
def allreduce(k, v, t, op='add'):
    o = 'v_add_f32' if op == 'add' else 'v_max_f32'
    for r in (8, 4, 2, 1):
        k(f'{o}_dpp v{v}, v{v}, v{v} row_ror:{r} row_mask:0xf bank_mask:0xf')
    k(f'v_mov_b32 v{t}, v{v}\nv_permlane16_swap_b32 v{t}, v{v}\n{o} v{v}, v{v}, v{t}')
    k(f'v_mov_b32 v{t}, v{v}\nv_permlane32_swap_b32 v{t}, v{v}\n{o} v{v}, v{v}, v{t}')
def unpack8(k, src, dst):
    for i in range(4):
        k(f'v_lshlrev_b32 v{dst+2*i}, 16, v{src+i}\nv_and_b32 v{dst+2*i+1}, 0xffff0000, v{src+i}')
def prologue(k, nwg, ptrs):
    k(f's_cmp_ge_u32 s2, {nwg}\ns_cbranch_scc1 {k.name}_end')
    for s, off in ptrs: k(f's_load_dwordx2 s[{s}:{s+1}], s[0:1], {off}')
    k('v_and_b32 v1, 63, v0\nv_lshrrev_b32 v2, 6, v0\nv_readfirstlane_b32 s3, v2')
    k('s_waitcnt lgkmcnt(0)')
def gen_k1():
    k = K('k1_kernel')
    prologue(k, 256, [(4, 0), (6, 8), (8, 24), (10, 32), (12, 104)])
    k('''s_and_b32 s17, s2, 7
    s_lshr_b32 s18, s2, 3
    s_and_b32 s14, s18, 7
    s_lshr_b32 s18, s18, 3
    s_lshr_b32 s15, s18, 1
    s_and_b32 s18, s18, 1
    s_lshl_b32 s16, s17, 1
    s_add_u32 s16, s16, s18
    s_cmp_eq_u32 s15, 0
    s_cselect_b32 s8, s8, s10
    s_cselect_b32 s9, s9, s11''')
    k.srd(20, 8, 9, 4*MB)
    k.srd(24, 6, 7, 2*MB)
    k.srd(28, 4, 5, 2*MB)
    k.srd_off(32, 12, 13, XN_OFF, 2*MB)
    k.srd_off(36, 12, 13, KV_OFF, 32*MB)
    stamp_init(k, 12, 13, 40); stamp(k, 0)
    k('''s_and_b32 s40, s3, 1
    s_lshl_b32 s41, s40, 1
    v_lshrrev_b32 v3, 5, v1
    v_add_u32 v4, s41, v3
    v_bfe_u32 v5, v1, 2, 3
    v_xor_b32 v5, v5, v4
    v_lshlrev_b32 v5, 6, v5
    v_lshl_add_u32 v5, v3, 13, v5
    v_and_b32 v6, 3, v1
    v_lshl_add_u32 v18, v6, 4, v5''')
    k('''s_lshl_b32 s41, s40, 2
    v_lshrrev_b32 v3, 4, v1
    v_add_u32 v4, s41, v3
    v_and_b32 v5, 7, v1
    v_xor_b32 v5, v5, v4
    v_lshlrev_b32 v5, 4, v5
    v_lshrrev_b32 v3, 3, v1
    v_lshl_add_u32 v19, v3, 10, v5''')
    k('''s_lshl_b32 s42, s3, 14
    s_lshl_b32 s45, s16, 9
    s_add_u32 s42, s42, s45
    s_lshl_b32 s43, s14, 18
    s_lshl_b32 s45, s3, 13
    s_add_u32 s43, s43, s45
    s_lshl_b32 s44, s3, 10''')
    WB = 98304
    def dma(t):
        L = []
        tw = t + 3
        if 0 <= tw < 16:
            for n in range(2):
                L.append([f's_add_u32 m0, s44, {WB + (tw % 4)*16384 + n*8192}', f's_add_u32 s46, s42, {(tw*32 + 16*n)*8192}', 'buffer_load_dwordx4 v18, s[20:23], s46 offen lds'])
        sc = t//2 + 2
        if 0 <= sc < 8:
            for n in range(2*(t & 1), 2*(t & 1) + 2):
                L.append([f's_add_u32 m0, s44, {(sc % 3)*32768 + n*8192}', f's_add_u32 s46, s43, {64*n*1024 + sc*128}', 'buffer_load_dwordx4 v19, s[24:27], s46 offen lds'])
        return L
    k('''s_lshl_b32 s47, s2, 3
    s_add_u32 s47, s47, s3
    s_lshl_b32 s48, s47, 10
    v_lshlrev_b32 v20, 4, v1
    buffer_load_dwordx4 v[24:27], v20, s[28:31], s48 offen''')
    for t in range(-4, 0):
        for g in dma(t): k('\n'.join(g))
    k('''v_bfe_u32 v3, v1, 2, 2
    v_lshrrev_b32 v4, 5, v1
    v_lshl_add_u32 v4, v4, 3, v3
    v_lshlrev_b32 v4, 9, v4
    v_and_b32 v5, 16, v1
    v_lshl_add_u32 v4, v5, 1, v4
    v_and_b32 v5, 3, v1
    v_lshl_add_u32 v4, v5, 3, v4
    s_lshl_b32 s45, s40, 8
    s_add_u32 s45, s45, 98304
    v_add_u32 v4, s45, v4''')
    for b in range(4):
        k(f'v_xor_b32 v5, {b}, v3\nv_lshl_add_u32 v{10+b}, v5, 6, v4')
    k('''s_lshr_b32 s45, s3, 1
    s_lshl_b32 s45, s45, 13
    v_and_b32 v4, 31, v1
    v_lshlrev_b32 v4, 7, v4
    v_add_u32 v4, s45, v4
    v_bfe_u32 v5, v1, 1, 3
    v_lshrrev_b32 v3, 5, v1
    v_xor_b32 v5, v5, v3
    v_lshl_add_u32 v14, v5, 4, v4''')
    for ks in range(1, 4): k(f'v_xor_b32 v{14+ks}, {32*ks}, v14')
    for ks in range(4): k(f'v_add_u32 v{4+ks}, 0x10000, v{14+ks}')
    k('s_waitcnt vmcnt(14)')
    unpack8(k, 24, 28)
    k('v_add_f32 v36, v28, v29')
    for i in range(2, 8): k(f'v_add_f32 v36, v36, v{28+i}')
    allreduce(k, 36, 37)
    k('v_mul_f32 v36, 0x3b000000, v36')
    for i in range(8): k(f'v_sub_f32 v{28+i}, v{28+i}, v36')
    k('v_mul_f32 v36, v28, v28')
    for i in range(1, 8): k(f'v_fmac_f32 v36, v{28+i}, v{28+i}')
    allreduce(k, 36, 37)
    k('''v_mov_b32 v37, 0x3727c5ac
    v_fmac_f32 v37, 0x3b000000, v36
    v_rsq_f32 v37, v37''')
    for i in range(8): k(f'v_mul_f32 v{28+i}, v{28+i}, v37')
    for i in range(4): k(f'v_cvt_pk_bf16_f32 v{24+i}, v{28+2*i}, v{29+2*i}')
    k('''s_lshr_b32 s48, s47, 5
    s_lshl_b32 s48, s48, 15
    s_and_b32 s49, s47, 31
    s_lshl_b32 s49, s49, 4
    s_add_u32 s48, s48, s49
    v_lshrrev_b32 v20, 1, v1
    v_lshlrev_b32 v20, 10, v20
    v_and_b32 v21, 1, v1
    v_lshl_add_u32 v20, v21, 9, v20
    buffer_store_dwordx4 v[24:27], v20, s[32:35], s48 offen''')
    def reads(G, st):
        t = G // 2; stage = G // 4; ks = G % 4
        W = 64 + st*24; C = 80 + st*24
        L = []
        for bw in range(4):
            for ii in range(2):
                L.append(f'ds_read_b64_tr_b16 v[{W+bw*4+ii*2}:{W+bw*4+ii*2+1}], v{10+bw} offset:{(t % 4)*16384 + (G & 1)*8192 + ii*2048}')
        sl = stage % 3
        for bc in range(2):
            if sl < 2: L.append(f'ds_read_b128 v[{C+bc*4}:{C+bc*4+3}], v{14+ks} offset:{sl*32768 + bc*4096}')
            else: L.append(f'ds_read_b128 v[{C+bc*4}:{C+bc*4+3}], v{4+ks} offset:{bc*4096}')
        return L
    def body(typ):
        for G in range(32):
            t = G // 2
            st = G & 1; W = 64 + st*24; C = 80 + st*24
            d = []
            if G % 2 == 0:
                prev = len(dma(t - 1)) + (1 if t == 0 else 0)
                k(f's_waitcnt vmcnt({prev})\ns_barrier')
                if G in (0, 8, 16, 24): stamp(k, 1 + G // 8)
                if G == 0: k('\n'.join(reads(0, 0)))
            nxt = reads(G + 1, st ^ 1) if G < 31 else []
            mf = []
            for bc in range(2):
                for bw in range(4):
                    a = 128 + (bc*4 + bw)*16
                    A, B = (W+bw*4, C+bc*4) if typ == 0 else (C+bc*4, W+bw*4)
                    c = '0' if G == 0 else f'v[{a}:{a+15}]'
                    mf.append(f'v_mfma_f32_32x32x16_bf16 v[{a}:{a+15}], v[{A}:{A+3}], v[{B}:{B+3}], {c}')
            if nxt:
                k('\n'.join(nxt)); k('s_waitcnt lgkmcnt(10)')
            else:
                k('s_waitcnt lgkmcnt(0)')
            dd = dma(t); fill = []
            for g in dd[(G & 1)*2:(G & 1)*2+2]: fill += g
            k('\n'.join(interleave([[m] for m in mf], fill)))
        stamp(k, 5)
        k('''s_lshl_b32 s50, s16, 1
        s_add_u32 s50, s50, s40
        s_lshl_b32 s50, s50, 5
        s_lshl_b32 s51, s14, 2
        s_add_u32 s50, s50, s51
        s_lshr_b32 s51, s3, 1
        s_add_u32 s50, s50, s51
        s_lshl_b32 s50, s50, 15
        v_lshlrev_b32 v20, 4, v1''')
        n = 0
        for bc in range(2):
            for bw in range(4):
                a = 128 + (bc*4 + bw)*16
                for half in range(2):
                    t = 64 + (n % 8)*4; n += 1
                    for i in range(4): k(f'v_cvt_pk_bf16_f32 v{t+i}, v{a+half*8+2*i}, v{a+half*8+2*i+1}')
                    off = (bc*8 + 2*bw + half)*1024 if typ == 0 else 16384 + ((2*bc + half)*4 + bw)*1024
                    k(f's_add_u32 s51, s50, {off}\nbuffer_store_dwordx4 v[{t}:{t+3}], v20, s[36:39], s51 offen')
    lv = k.lab('v')
    k(f's_cmp_eq_u32 s15, 1\ns_cbranch_scc1 {lv}')
    body(0)
    stamp(k, 6)
    k(f's_branch {k.name}_end\n{lv}:')
    body(1)
    stamp(k, 6)
    k(f'{k.name}_end:')
    return k, 256, 64, '; @launch kernel=k1_kernel grid=(256,1,1) block=(512,1,1) lds=163840'
```

```python
from asmlib import *
import os
MB = 1 << 20
XN_OFF, KV_OFF, QS_OFF, CTX_OFF, PART_OFF, H_OFF, HN_OFF, U_OFF = 0, 2*MB, 34*MB, 50*MB, 66*MB, 82*MB, 84*MB, 86*MB
WS_SIZE = 256 * MB
def allreduce(k, v, t, op='add'):
    o = 'v_add_f32' if op == 'add' else 'v_max_f32'
    for r in (8, 4, 2, 1):
        k(f'{o}_dpp v{v}, v{v}, v{v} row_ror:{r} row_mask:0xf bank_mask:0xf')
    k(f'v_mov_b32 v{t}, v{v}\nv_permlane16_swap_b32 v{t}, v{v}\n{o} v{v}, v{v}, v{t}')
    k(f'v_mov_b32 v{t}, v{v}\nv_permlane32_swap_b32 v{t}, v{v}\n{o} v{v}, v{v}, v{t}')
def unpack8(k, src, dst):
    for i in range(4):
        k(f'v_lshlrev_b32 v{dst+2*i}, 16, v{src+i}\nv_and_b32 v{dst+2*i+1}, 0xffff0000, v{src+i}')
def prologue(k, nwg, ptrs):
    k(f's_cmp_ge_u32 s2, {nwg}\ns_cbranch_scc1 {k.name}_end')
    for s, off in ptrs: k(f's_load_dwordx2 s[{s}:{s+1}], s[0:1], {off}')
    k('v_and_b32 v1, 63, v0\nv_lshrrev_b32 v2, 6, v0\nv_readfirstlane_b32 s3, v2')
    k('s_waitcnt lgkmcnt(0)')
def gen_k1():
    k = K('k1_kernel')
    prologue(k, 256, [(4, 0), (6, 8), (8, 24), (10, 32), (12, 104), (52, 16)])
    k('''s_and_b32 s17, s2, 7
    s_lshr_b32 s18, s2, 3
    s_and_b32 s14, s18, 7
    s_lshr_b32 s18, s18, 3
    s_lshr_b32 s15, s18, 1
    s_and_b32 s18, s18, 1
    s_lshl_b32 s16, s17, 1
    s_add_u32 s16, s16, s18
    s_cmp_eq_u32 s15, 0
    s_cselect_b32 s8, s8, s10
    s_cselect_b32 s9, s9, s11''')
    k.srd(20, 8, 9, 4*MB)
    k.srd(24, 6, 7, 2*MB)
    k.srd(28, 4, 5, 2*MB)
    k.srd_off(32, 12, 13, XN_OFF, 2*MB)
    k.srd_off(36, 12, 13, KV_OFF, 32*MB)
    stamp_init(k, 12, 13, 40); stamp(k, 0)
    k('''s_and_b32 s40, s3, 1
    s_lshl_b32 s41, s40, 1
    v_lshrrev_b32 v3, 5, v1
    v_add_u32 v4, s41, v3
    v_bfe_u32 v5, v1, 2, 3
    v_xor_b32 v5, v5, v4
    v_lshlrev_b32 v5, 6, v5
    v_lshl_add_u32 v5, v3, 13, v5
    v_and_b32 v6, 3, v1
    v_lshl_add_u32 v18, v6, 4, v5''')
    k('''s_lshl_b32 s41, s40, 2
    v_lshrrev_b32 v3, 4, v1
    v_add_u32 v4, s41, v3
    v_and_b32 v5, 7, v1
    v_xor_b32 v5, v5, v4
    v_lshlrev_b32 v5, 4, v5
    v_lshrrev_b32 v3, 3, v1
    v_lshl_add_u32 v19, v3, 10, v5''')
    k('''s_lshl_b32 s42, s3, 14
    s_lshl_b32 s45, s16, 9
    s_add_u32 s42, s42, s45
    s_lshl_b32 s43, s14, 18
    s_lshl_b32 s45, s3, 13
    s_add_u32 s43, s43, s45
    s_lshl_b32 s44, s3, 10''')
    WB = 98304
    def dma(t):
        L = []
        tw = t + 3
        if 0 <= tw < 16:
            for n in range(2):
                L.append([f's_add_u32 m0, s44, {WB + (tw % 4)*16384 + n*8192}', f's_add_u32 s46, s42, {(tw*32 + 16*n)*8192}', 'buffer_load_dwordx4 v18, s[20:23], s46 offen lds'])
        sc = t//2 + 2
        if 0 <= sc < 8:
            for n in range(2*(t & 1), 2*(t & 1) + 2):
                L.append([f's_add_u32 m0, s44, {(sc % 3)*32768 + n*8192}', f's_add_u32 s46, s43, {64*n*1024 + sc*128}', 'buffer_load_dwordx4 v19, s[24:27], s46 offen lds'])
        return L
    k('''s_lshl_b32 s47, s2, 3
    s_add_u32 s47, s47, s3
    s_lshl_b32 s48, s47, 10
    v_lshlrev_b32 v20, 4, v1
    buffer_load_dwordx4 v[24:27], v20, s[28:31], s48 offen''')
    for t in range(-4, 0):
        for g in dma(t): k('\n'.join(g))
    k('''v_bfe_u32 v3, v1, 2, 2
    v_lshrrev_b32 v4, 5, v1
    v_lshl_add_u32 v4, v4, 3, v3
    v_lshlrev_b32 v4, 9, v4
    v_and_b32 v5, 16, v1
    v_lshl_add_u32 v4, v5, 1, v4
    v_and_b32 v5, 3, v1
    v_lshl_add_u32 v4, v5, 3, v4
    s_lshl_b32 s45, s40, 8
    s_add_u32 s45, s45, 98304
    v_add_u32 v4, s45, v4''')
    for b in range(4):
        k(f'v_xor_b32 v5, {b}, v3\nv_lshl_add_u32 v{10+b}, v5, 6, v4')
    k('''s_lshr_b32 s45, s3, 1
    s_lshl_b32 s45, s45, 13
    v_and_b32 v4, 31, v1
    v_lshlrev_b32 v4, 7, v4
    v_add_u32 v4, s45, v4
    v_bfe_u32 v5, v1, 1, 3
    v_lshrrev_b32 v3, 5, v1
    v_xor_b32 v5, v5, v3
    v_lshl_add_u32 v14, v5, 4, v4''')
    for ks in range(1, 4): k(f'v_xor_b32 v{14+ks}, {32*ks}, v14')
    for ks in range(4): k(f'v_add_u32 v{4+ks}, 0x10000, v{14+ks}')
    k('s_waitcnt vmcnt(14)')
    unpack8(k, 24, 28)
    k('v_add_f32 v36, v28, v29')
    for i in range(2, 8): k(f'v_add_f32 v36, v36, v{28+i}')
    allreduce(k, 36, 37)
    k('v_mul_f32 v36, 0x3b000000, v36')
    for i in range(8): k(f'v_sub_f32 v{28+i}, v{28+i}, v36')
    k('v_mul_f32 v36, v28, v28')
    for i in range(1, 8): k(f'v_fmac_f32 v36, v{28+i}, v{28+i}')
    allreduce(k, 36, 37)
    k('''v_mov_b32 v37, 0x3727c5ac
    v_fmac_f32 v37, 0x3b000000, v36
    v_rsq_f32 v37, v37''')
    for i in range(8): k(f'v_mul_f32 v{28+i}, v{28+i}, v37')
    for i in range(4): k(f'v_cvt_pk_bf16_f32 v{24+i}, v{28+2*i}, v{29+2*i}')
    k('''s_lshr_b32 s48, s47, 5
    s_lshl_b32 s48, s48, 15
    s_and_b32 s49, s47, 31
    s_lshl_b32 s49, s49, 4
    s_add_u32 s48, s48, s49
    v_lshrrev_b32 v20, 1, v1
    v_lshlrev_b32 v20, 10, v20
    v_and_b32 v21, 1, v1
    v_lshl_add_u32 v20, v21, 9, v20
    buffer_store_dwordx4 v[24:27], v20, s[32:35], s48 offen''')
    def reads(G, st):
        t = G // 2; stage = G // 4; ks = G % 4
        W = 64 + st*24; C = 80 + st*24
        L = []
        for bw in range(4):
            for ii in range(2):
                L.append(f'ds_read_b64_tr_b16 v[{W+bw*4+ii*2}:{W+bw*4+ii*2+1}], v{10+bw} offset:{(t % 4)*16384 + (G & 1)*8192 + ii*2048}')
        sl = stage % 3
        for bc in range(2):
            if sl < 2: L.append(f'ds_read_b128 v[{C+bc*4}:{C+bc*4+3}], v{14+ks} offset:{sl*32768 + bc*4096}')
            else: L.append(f'ds_read_b128 v[{C+bc*4}:{C+bc*4+3}], v{4+ks} offset:{bc*4096}')
        return L
    def body(typ):
        for G in range(32):
            t = G // 2
            st = G & 1; W = 64 + st*24; C = 80 + st*24
            d = []
            if G % 2 == 0:
                prev = len(dma(t - 1)) + (1 if t == 0 else 0)
                k(f's_waitcnt vmcnt({prev})\ns_barrier')
                if G in (0, 8, 16, 24): stamp(k, 1 + G // 8)
                if G == 0: k('\n'.join(reads(0, 0)))
            nxt = reads(G + 1, st ^ 1) if G < 31 else []
            mf = []
            for bc in range(2):
                for bw in range(4):
                    a = 128 + (bc*4 + bw)*16
                    A, B = (W+bw*4, C+bc*4) if typ == 0 else (C+bc*4, W+bw*4)
                    c = '0' if G == 0 else f'v[{a}:{a+15}]'
                    mf.append(f'v_mfma_f32_32x32x16_bf16 v[{a}:{a+15}], v[{A}:{A+3}], v[{B}:{B+3}], {c}')
            if nxt:
                k('\n'.join(nxt)); k('s_waitcnt lgkmcnt(10)')
            else:
                k('s_waitcnt lgkmcnt(0)')
            dd = dma(t); fill = []
            for g in dd[(G & 1)*2:(G & 1)*2+2]: fill += g
            k('\n'.join(interleave([[m] for m in mf], fill)))
        stamp(k, 5)
        if os.environ.get('PF', '1') == '1':
            pf = k.lab('pf')
            k.srd(56, 52, 53, 4*MB)
            k(f'''s_cmp_ge_u32 s3, 2
            s_cbranch_scc1 {pf}
            s_lshr_b32 s50, s2, 3
            s_lshl_b32 s50, s50, 1
            s_add_u32 s50, s50, s3
            s_lshl_b32 s50, s50, 16
            s_lshl_b32 s51, s17, 10
            s_add_u32 s50, s50, s51
            v_lshrrev_b32 v20, 3, v1
            v_lshlrev_b32 v20, 13, v20
            v_and_b32 v21, 7, v1
            v_lshl_add_u32 v20, v21, 7, v20
            buffer_load_dword v21, v20, s[56:59], s50 offen
            {pf}:''')
        k('''s_lshl_b32 s50, s16, 1
        s_add_u32 s50, s50, s40
        s_lshl_b32 s50, s50, 5
        s_lshl_b32 s51, s14, 2
        s_add_u32 s50, s50, s51
        s_lshr_b32 s51, s3, 1
        s_add_u32 s50, s50, s51
        s_lshl_b32 s50, s50, 15
        v_lshlrev_b32 v20, 4, v1''')
        n = 0
        for bc in range(2):
            for bw in range(4):
                a = 128 + (bc*4 + bw)*16
                for half in range(2):
                    t = 64 + (n % 8)*4; n += 1
                    for i in range(4): k(f'v_cvt_pk_bf16_f32 v{t+i}, v{a+half*8+2*i}, v{a+half*8+2*i+1}')
                    off = (bc*8 + 2*bw + half)*1024 if typ == 0 else 16384 + ((2*bc + half)*4 + bw)*1024
                    k(f's_add_u32 s51, s50, {off}\nbuffer_store_dwordx4 v[{t}:{t+3}], v20, s[36:39], s51 offen')
    lv = k.lab('v')
    k(f's_cmp_eq_u32 s15, 1\ns_cbranch_scc1 {lv}')
    body(0)
    stamp(k, 6)
    k(f's_waitcnt vmcnt(0)\ns_branch {k.name}_end\n{lv}:')
    body(1)
    stamp(k, 6)
    k('s_waitcnt vmcnt(0)')
    k(f'{k.name}_end:')
    return k, 256, 64, '; @launch kernel=k1_kernel grid=(256,1,1) block=(512,1,1) lds=163840'
```

```python
import sys
from asmlib import *
import k1
NAME = 'sequential_preLN__compressed_kv_cla__mixer_token_mlp__prompt'
ref = open(f'cdna_kernels/{NAME}.s.ref').read().split('\n')
hdr = '\n'.join(l for l in ref[:15]) + '\n'
mods = [k1.gen_k1]
for m, f in (('k2', 'gen_k2'), ('k3', 'gen_k3'), ('k4', 'gen_k4'), ('k5', 'gen_k5'), ('k5', 'gen_k6')):
    try:
        mod = __import__(m); mods.append(getattr(mod, f))
    except ImportError: pass
ks = []; ls = []
for f in mods:
    k, nv, ns, l = f(); ks.append((k, nv, ns)); ls.append(l)
import os, re
STF = os.environ.get('STF', '')
txt = wrap(ks, ls, hdr)
if STF:
    fl = dict(x.split(':') for x in STF.split(','))
    o = []; cur = None
    for l in txt.split('\n'):
        m = re.match(r'^(k\d)_kernel:', l)
        if m: cur = m.group(1)
        if cur in fl and l.strip().startswith('buffer_store') and 's[72:75]' not in l: l = l + ' ' + fl[cur]
        o.append(l)
    txt = '\n'.join(o)
out = sys.argv[1] if len(sys.argv) > 1 else f'cdna_kernels/{NAME}.s'
open(out, 'w').write(txt)
print('written', out)
```
